```python
import torch

def _softmax(x, axis=-1):
    return torch.softmax(x, dim=axis)
def _gelu(x):
    return torch.nn.functional.gelu(x, approximate="tanh")
def _silu(x):
    return torch.nn.functional.silu(x)
def _sigmoid(x):
    return torch.sigmoid(x)
def _layernorm(x, axis=-1, eps=1e-5):
    m = x.mean(dim=axis, keepdim=True)
    v = x.var(dim=axis, keepdim=True, unbiased=False)
    return (x - m) / torch.sqrt(v + eps)
def _scatter_add(tgt, idx, src, axis=0):
    return tgt.clone().index_add_(axis, idx, src)
def _segment_sum(src, seg, n):
    out = torch.zeros((n,) + src.shape[1:], dtype=src.dtype)
    return out.index_add_(0, seg, src)
def _pad(x, pw):
    flat = tuple(v for pair in reversed(pw) for v in pair)
    return torch.nn.functional.pad(x, flat)

kernel_name = 'standalone__fm_second_order__recsys'

def setup_inputs():

    _w = (lambda a: (lambda t: t.to(torch.bfloat16) if t.is_floating_point() else t)(torch.as_tensor(a)))
    B, F, D, V = 4096, 26, 128, min(1000000, 100000)
    return {
        "idx": _w((lambda lo, hi, *s: torch.randint(lo, hi, s))(0, V, B, F).to(torch.int64)),
        "table": _w((lambda *s: torch.randn(*s, dtype=torch.bfloat16) * 0.05)(V, D)),
    }

def reference(idx, table):
    emb = table[idx]
    sum_sq = emb.sum(axis=1) ** 2
    sq_sum = (emb ** 2).sum(axis=1)
    return 0.5 * (sum_sq - sq_sum).sum(axis=-1)
```

```python
import sys

HEADER = """; Kernarg layout for this problem (40 bytes, ptrs only, base s[0:1]):
; @launch grid=({grid},1,1) block=({block},1,1) lds=0
.amdgcn_target "amdgcn-amd-amdhsa--gfx950"
.text
.globl standalone__fm_second_order__recsys_kernel
.p2align 8
.type standalone__fm_second_order__recsys_kernel,@function
standalone__fm_second_order__recsys_kernel:
"""

FOOTER = """.section .rodata,"a"
.p2align 6
.amdhsa_kernel standalone__fm_second_order__recsys_kernel
  .amdhsa_next_free_vgpr {vgpr}
  .amdhsa_next_free_sgpr {sgpr}
  .amdhsa_accum_offset {accum}
  .amdhsa_group_segment_fixed_size 0
  .amdhsa_kernarg_size 40
  .amdhsa_user_sgpr_count 2
  .amdhsa_user_sgpr_kernarg_segment_ptr 1
  .amdhsa_system_sgpr_workgroup_id_x 1
  .amdhsa_float_denorm_mode_32 3
.end_amdhsa_kernel
"""

B, F, D, V = 4096, 26, 128, 100000


def gen_e(waves_per_wg=4, tflags=""):
    spw = 4
    spwg = spw * waves_per_wg
    grid = B // spwg
    block = 64 * waves_per_wg
    L = []
    A = L.append
    A("    s_load_dwordx2 s[4:5], s[0:1], 0       ; idx")
    A("    s_load_dwordx2 s[8:9], s[0:1], 8       ; table")
    A("    s_load_dwordx2 s[12:13], s[0:1], 16    ; out")
    A(f"    s_cmp_ge_u32 s2, {grid}")
    A("    s_cbranch_scc1 L_done")
    A(f"    s_mov_b32 s6, {B*F*4}")
    A("    s_mov_b32 s7, 0x00020000")
    A(f"    s_mov_b32 s10, {V*D*2}")
    A("    s_mov_b32 s11, 0x00020000")
    A(f"    s_mov_b32 s14, {B*2}")
    A("    s_mov_b32 s15, 0x00020000")
    A(f"    s_mul_i32 s3, s2, {spwg*F*4}")
    A(f"    s_lshl_b32 s18, s2, {(spwg*2).bit_length()-1}")
    A("    s_mov_b32 s16, 0x00003f80")
    A("    s_mov_b32 s17, 0x3f800000")
    A("    v_lshrrev_b32 v1, 4, v0")
    A("    v_mul_u32_u24 v2, 104, v1")
    A("    v_and_b32 v3, 15, v0")
    A("    v_lshlrev_b32 v3, 4, v3")
    A("    v_lshlrev_b32 v1, 1, v1")
    IDX = 4
    ACC = 30
    DAT = 40
    A("    s_waitcnt lgkmcnt(0)")
    for k in range(6):
        A(f"    buffer_load_dwordx4 v[{IDX+4*k}:{IDX+4*k+3}], v2, s[4:7], s3 offen offset:{16*k}")
    A(f"    buffer_load_dwordx2 v[{IDX+24}:{IDX+25}], v2, s[4:7], s3 offen offset:96")
    for j in range(9):
        A(f"    v_mov_b32 v{ACC+j}, 0")
    for f in range(F):
        if f % 4 == 0:
            k = f // 4
            A(f"    s_waitcnt vmcnt({(6-k)+f})")
        A(f"    v_lshl_add_u32 v{IDX+f}, v{IDX+f}, 8, v3")
        A(f"    buffer_load_dwordx4 v[{DAT+4*f}:{DAT+4*f+3}], v{IDX+f}, s[8:11], 0 offen{tflags}")
    for f in range(F):
        A(f"    s_waitcnt vmcnt({F-1-f})")
        for w in range(4):
            x = DAT + 4 * f + w
            A(f"    v_dot2c_f32_bf16 v{ACC+2*w}, s16, v{x}")
            A(f"    v_dot2c_f32_bf16 v{ACC+2*w+1}, s17, v{x}")
            A(f"    v_dot2c_f32_bf16 v{ACC+8}, v{x}, v{x}")
    A("    s_nop 2")
    A(f"    v_mul_f32 v4, v{ACC}, v{ACC}")
    A(f"    v_mul_f32 v5, v{ACC+1}, v{ACC+1}")
    for j in range(2, 8):
        A(f"    v_fmac_f32 v{4+(j&1)}, v{ACC+j}, v{ACC+j}")
    A(f"    v_sub_f32 v4, v4, v{ACC+8}")
    A("    v_add_f32 v4, v4, v5")
    for r in (8, 4, 2, 1):
        A("    s_nop 1")
        A(f"    v_add_f32_dpp v4, v4, v4 row_ror:{r} row_mask:0xf bank_mask:0xf")
    A("    v_mul_f32 v4, 0.5, v4")
    A("    v_cvt_pk_bf16_f32 v4, v4, v4")
    A("    s_mov_b32 exec_lo, 0x00010001")
    A("    s_mov_b32 exec_hi, 0x00010001")
    A("    buffer_store_short v4, v1, s[12:15], s18 offen")
    A("L_done:")
    A("    s_endpgm")
    nv = DAT + 4 * F
    return (HEADER.format(grid=grid, block=block) + "\n".join(L) + "\n"
            + FOOTER.format(vgpr=nv, sgpr=24, accum=(nv + 3) // 4 * 4))


if __name__ == "__main__":
    import os
    out = "cdna_kernels"
    variants = {
        "e_w4": gen_e(4),
        "e_w1": gen_e(1),
        "e_w2": gen_e(2),
        "e_w4_nt": gen_e(4, " nt"),
    }
    for k, v in variants.items():
        open(f"{out}/var_{k}.s", "w").write(v)
    open(f"{out}/standalone__fm_second_order__recsys.s", "w").write(variants["e_w4"])
```
